```python
import torch

def _softmax(x, axis=-1):
    return torch.softmax(x, dim=axis)
def _gelu(x):
    return torch.nn.functional.gelu(x, approximate="tanh")
def _silu(x):
    return torch.nn.functional.silu(x)
def _sigmoid(x):
    return torch.sigmoid(x)
def _layernorm(x, axis=-1, eps=1e-5):
    m = x.mean(dim=axis, keepdim=True)
    v = x.var(dim=axis, keepdim=True, unbiased=False)
    return (x - m) / torch.sqrt(v + eps)
def _scatter_add(tgt, idx, src, axis=0):
    return tgt.clone().index_add_(axis, idx, src)
def _segment_sum(src, seg, n):
    out = torch.zeros((n,) + src.shape[1:], dtype=src.dtype)
    return out.index_add_(0, seg, src)
def _pad(x, pw):
    flat = tuple(v for pair in reversed(pw) for v in pair)
    return torch.nn.functional.pad(x, flat)

kernel_name = 'sequential_preLN__ssm_conv_s4d__dense_activation_relu__prompt'

def setup_inputs():

    _w = (lambda a: (lambda t: t.to(torch.bfloat16) if t.is_floating_point() else t)(torch.as_tensor(a)))
    def _A_setup():
        Bsz, L, D, N = 1, 2048, 512, 128
        return {
            "u": _w((lambda *s: torch.randn(*s, dtype=torch.bfloat16) * 0.05)(Bsz, L, D)),
            "log_A_real": _w((lambda *s: torch.randn(*s, dtype=torch.bfloat16) * 6.4)(D, N) * 0.5),
            "A_imag": _w((lambda *s: torch.randn(*s, dtype=torch.bfloat16) * 0.05)(D, N) * 3.14),
            "C_real": _w((lambda *s: torch.randn(*s, dtype=torch.bfloat16) * 0.05)(D, N) / N ** 0.5),
            "C_imag": _w((lambda *s: torch.randn(*s, dtype=torch.bfloat16) * 0.05)(D, N) / N ** 0.5),
            "log_dt": _w((lambda *s: torch.randn(*s, dtype=torch.bfloat16) * 0.05)(D) * 0.5 - 4.0),
            "D_skip": _w((lambda *s: torch.randn(*s, dtype=torch.bfloat16) * 0.05)(D)),
        }
    _A_in = _A_setup()

    def _B_setup():
        B, S, D, Dff = 1, 2048, 512, 1792
        return {
            "x": _w((lambda *s: torch.randn(*s, dtype=torch.bfloat16) * 0.05)(B, S, D)),
            "w1": _w((lambda *s: torch.randn(*s, dtype=torch.bfloat16) * 0.05)(D, Dff)),
            "w2": _w((lambda *s: torch.randn(*s, dtype=torch.bfloat16) * 0.05)(Dff, D)),
        }
    _B_in = _B_setup()

    return {
        "A_u": _A_in["u"],
        "A_log_A_real": _A_in["log_A_real"],
        "A_A_imag": _A_in["A_imag"],
        "A_C_real": _A_in["C_real"],
        "A_C_imag": _A_in["C_imag"],
        "A_log_dt": _A_in["log_dt"],
        "A_D_skip": _A_in["D_skip"],
        "B_x": _B_in["x"],
        "B_w1": _B_in["w1"],
        "B_w2": _B_in["w2"],
    }

def reference(A_u, A_log_A_real, A_A_imag, A_C_real, A_C_imag, A_log_dt, A_D_skip, B_x, B_w1, B_w2):
    def _A_ref(u, log_A_real, A_imag, C_real, C_imag, log_dt, D_skip):
        L = u.shape[1]
        dt = torch.exp(log_dt)
        A = -torch.exp(log_A_real) + 1j * A_imag
        C = (C_real + 1j * C_imag) * dt[:, None]
        pos = (lambda x, dt: x.to(dt))(torch.arange(L), log_dt.dtype)
        P = torch.exp((A * dt[:, None])[:, :, None] * pos[None, None, :])
        K = 2.0 * torch.einsum("dn,dnl->dl", C, P).real
        L2 = 2 * L
        u_t = (lambda x, *d: x.permute(*d))(u, 0, 2, 1)
        Kf = (lambda x, *a, **k: torch.fft.rfft(x.float(), *a, **k))(K, L2)
        Uf = (lambda x, *a, **k: torch.fft.rfft(x.float(), *a, **k))(u_t, L2)
        y = (lambda x, *a, **k: torch.fft.irfft(x, *a, **k).to(torch.bfloat16))(Uf * Kf[None, :, :], L2)[:, :, :L]
        y = (lambda x, *d: x.permute(*d))(y, 0, 2, 1)
        return y + u * D_skip[None, None, :]

    def _B_ref(x, w1, w2):
        h = torch.einsum("bsd,df->bsf", x, w1)
        zero = torch.zeros_like(h)
        h = torch.maximum(h, zero)
        return torch.einsum("bsf,fd->bsd", h, w2)

    x = A_u
    h = x + _A_ref(_layernorm(x, axis=-1), A_log_A_real, A_A_imag, A_C_real, A_C_imag, A_log_dt, A_D_skip)
    h2 = h + _B_ref(_layernorm(h, axis=-1), B_w1, B_w2)
    return h2
```

```python
class Asm:
    def __init__(self):
        self.L = []
        self.lbl = 0
    def __call__(self, s):
        for line in s.split("\n"):
            line = line.strip()
            if line: self.L.append("    " + line if not line.endswith(":") else line)
    def label(self, p="L"):
        self.lbl += 1
        return f"{p}_{self.lbl}"
    def text(self):
        return "\n".join(self.L) + "\n"

def vr(a, n=1):
    return f"v{a}" if n == 1 else f"v[{a}:{a+n-1}]"
def ar(a, n=1):
    return f"a{a}" if n == 1 else f"a[{a}:{a+n-1}]"
def sr(a, n=1):
    return f"s{a}" if n == 1 else f"s[{a}:{a+n-1}]"

def kernel_head(name):
    return f".text\n.globl {name}\n.p2align 8\n.type {name},@function\n{name}:\n"

def kernel_desc(name, vgpr, sgpr, accum=None, kernarg=104):
    if accum is None: accum = (vgpr + 3) // 4 * 4
    return (f'.section .rodata,"a"\n.p2align 6\n.amdhsa_kernel {name}\n'
            f"  .amdhsa_next_free_vgpr {vgpr}\n  .amdhsa_next_free_sgpr {sgpr}\n  .amdhsa_accum_offset {accum}\n"
            f"  .amdhsa_group_segment_fixed_size 0\n  .amdhsa_kernarg_size {kernarg}\n  .amdhsa_user_sgpr_count 2\n"
            f"  .amdhsa_user_sgpr_kernarg_segment_ptr 1\n  .amdhsa_system_sgpr_workgroup_id_x 1\n"
            f"  .amdhsa_float_denorm_mode_32 3\n"
            f".end_amdhsa_kernel\n")
```

```python
import sys
from asmlib import *

UT = 0x000000
RK = 0x200000
BS = 0x400000
HPK = 0x800000
HP = 0xA00000
CS = 0x1100000
ST = 0x1110000
TM = 0x1180000
WS_USED = 0x1200000

KA_U, KA_LOGA, KA_AIM, KA_CRE, KA_CIM, KA_LOGDT, KA_DSKIP, KA_BX, KA_W1, KA_W2, KA_OUT, KA_DBG, KA_WS = [8*i for i in range(13)]
LOG2E = 0x3fb8aa3b
INV2PI = 0x3e22f983
INV512 = 0x3b000000

def srd(A, s, base_lo, base_hi, nbytes):
    A(f"s_mov_b32 s{s}, s{base_lo}")
    A(f"s_and_b32 s{s+1}, s{base_hi}, 0xffff")
    A(f"s_mov_b32 s{s+2}, {nbytes:#x}")
    A(f"s_mov_b32 s{s+3}, 0x20000")

def stamp(A, sreg):
    A(f"s_memtime s[{sreg}:{sreg+1}]")

class Q:
    def __init__(self, A, cnt, cap): self.A = A; self.q = []; self.cnt = cnt; self.cap = cap
    def issue(self, tag, text):
        if len(self.q) >= self.cap + 1:
            self.A(f"s_waitcnt {self.cnt}({self.cap})"); self.q = self.q[len(self.q) - self.cap:]
        self.A(text); self.q.append(tag)
    def need(self, tags, cap=None):
        idx = max([i for i, t in enumerate(self.q) if t in tags], default=-1)
        if idx < 0: return
        n = min(len(self.q) - 1 - idx, self.cap if cap is None else cap)
        self.A(f"s_waitcnt {self.cnt}({n})")
        self.q = self.q[len(self.q) - n:] if n else []
    def drain(self):
        self.A(f"s_waitcnt {self.cnt}(0)"); self.q = []

T0, T1, T2, T3, T4, RT0, RT1 = 80, 82, 84, 86, 88, 90, 92
def timing_head(A):
    stamp(A, T0); A(f"s_memrealtime s[{RT0}:{RT0+1}]")
    for t in (T1, T2, T3): A(f"s_mov_b64 s[{t}:{t+1}], 0")
def timing_tail(A, sWS, swave, nw, base):
    A("s_waitcnt vmcnt(0)")
    stamp(A, T4)
    A(f"s_memrealtime s[{RT1}:{RT1+1}]")
    A("s_waitcnt lgkmcnt(0)")
    for t in (T1, T2, T3, T4): A(f"s_sub_u32 s{t}, s{t}, s{T0}")
    for i, t in enumerate((T1, T2, T3, T4, RT0, RT1)): A(f"v_mov_b32 v{20+i}, s{t}")
    A(f"s_mul_i32 s94, s2, {nw}\ns_add_u32 s94, s94, s{swave}\ns_lshl_b32 s94, s94, 5\ns_add_u32 s94, s94, {base:#x}")
    A(f"v_mov_b32 v28, 0")
    A(f"s_mov_b64 exec, 1")
    A(f"buffer_store_dwordx4 v[20:23], v28, {sr(sWS,4)}, s94 offen")
    A(f"buffer_store_dwordx2 v[24:25], v28, {sr(sWS,4)}, s94 offen offset:16")

def bf16r(A, v):
    A(f"v_cvt_pk_bf16_f32 v{v}, v{v}, v{v}")
    A(f"v_and_b32 v{v}, 0xffff0000, v{v}")

def cmul(A, dst, x, y, tmp=None):
    t = dst if tmp is None else tmp
    A(f"v_pk_mul_f32 {vr(t,2)}, {vr(x,2)}, {vr(y,2)} op_sel:[0,0] op_sel_hi:[0,1]")
    A(f"v_pk_fma_f32 {vr(dst,2)}, {vr(x,2)}, {vr(y,2)}, {vr(t,2)} op_sel:[1,1,0] op_sel_hi:[1,0,1] neg_lo:[1,0,0]")

def wave_reduce(A, op, regs):
    steps = ["row_shr:1", "row_shr:2", "row_shr:4", "row_shr:8", "row_bcast:15 row_mask:0xa", "row_bcast:31 row_mask:0xc"]
    for st in steps:
        rm = "" if "row_mask" in st else " row_mask:0xf"
        if len(regs) < 3: A(f"s_nop {2-len(regs)}")
        for r in regs:
            A(f"{op}_dpp v{r}, v{r}, v{r} {st}{rm} bank_mask:0xf")

def gen_k1(name="k1_kernel", timing=False):
    A = Asm()
    sWS = 12
    sw = 20
    vlane, vt, vt2 = 1, 2, 3
    if timing: timing_head(A)
    A(f"s_cmp_ge_u32 s2, 540\ns_cbranch_scc1 {name}_end")
    A(f"s_load_dwordx2 s[26:27], s[0:1], {KA_WS}")
    A(f"v_and_b32 v{vlane}, 63, v0")
    A(f"v_lshrrev_b32 v{vt}, 6, v0")
    A("s_and_b32 s30, s2, 7")
    A(f"v_readfirstlane_b32 s{sw}, v{vt}")
    A("s_bfe_u32 s31, s2, 0x50003")
    A("s_lshl_b32 s32, s30, 5\ns_add_u32 s32, s32, s31")
    A(f"s_cmp_ge_u32 s2, 512\ns_cbranch_scc1 {name}_cs")
    A(f"s_cmp_ge_u32 s2, 256\ns_cbranch_scc1 {name}_ln")
    A(f"s_load_dwordx8 s[4:11], s[0:1], {KA_LOGA}")
    A(f"s_load_dwordx2 s[16:17], s[0:1], {KA_LOGDT}")
    A(f"s_lshr_b32 s33, s{sw}, 1")
    A(f"s_and_b32 s34, s{sw}, 1")
    A("s_lshl_b32 s35, s32, 1\ns_add_u32 s35, s35, s33")
    vla, vai, vcr, vci, vcr2, vci2, vdt = 4, 5, 6, 7, 8, 9, 10
    for r in range(4, 11): A(f"v_mov_b32 v{r}, 0")
    A("s_lshl_b32 s36, s35, 8\ns_lshl_b32 s37, s34, 7\ns_add_u32 s36, s36, s37")
    A(f"v_lshl_add_u32 v{vt}, v{vlane}, 1, s36")
    A(f"v_xor_b32 v{vt2}, 128, v{vt}")
    A("s_lshl_b32 s37, s35, 1")
    A(f"v_mov_b32 v11, s37")
    A("s_waitcnt lgkmcnt(0)")
    A(f"global_load_short_d16_hi v{vdt}, v11, s[16:17]")
    A(f"global_load_short_d16_hi v{vla}, v{vt}, s[4:5]")
    A(f"global_load_short_d16_hi v{vai}, v{vt}, s[6:7]")
    A(f"global_load_short_d16_hi v{vcr}, v{vt}, s[8:9]")
    A(f"global_load_short_d16_hi v{vci}, v{vt}, s[10:11]")
    A(f"global_load_short_d16_hi v{vcr2}, v{vt2}, s[8:9]")
    A(f"global_load_short_d16_hi v{vci2}, v{vt2}, s[10:11]")
    srd(A, sWS, 26, 27, WS_USED)
    ROW = 528; CHB = 64 * ROW
    vwa, vra, vrb, vst = 12, 13, 14, 15
    A(f"s_mul_i32 s36, s33, {CHB}\ns_lshl_b32 s37, s34, 8\ns_add_u32 s37, s37, s36")
    A(f"v_lshl_add_u32 v{vwa}, v{vlane}, 2, s37")
    A(f"v_and_b32 v{vt}, 15, v{vlane}\nv_mul_u32_u24 v{vra}, {ROW}, v{vt}")
    A(f"v_lshrrev_b32 v{vt2}, 4, v{vlane}\nv_lshl_add_u32 v{vra}, v{vt2}, 4, v{vra}")
    A(f"v_add_u32 v{vra}, s36, v{vra}")
    A(f"s_mul_i32 s37, s34, {16*ROW}\ns_add_u32 s37, s37, {32*ROW}")
    A(f"v_add_u32 v{vrb}, s37, v{vra}")
    A(f"s_lshl_b32 s37, s34, 8\ns_sub_u32 s37, {255*16}, s37")
    A(f"v_lshlrev_b32 v{vt}, 4, v{vt}\nv_sub_u32 v{vst}, s37, v{vt}")
    A(f"s_lshl_b32 s38, s35, 12\ns_add_u32 s38, s38, {RK:#x}")
    A(f"s_mov_b32 s40, {LOG2E:#x}\ns_mov_b32 s41, {INV2PI:#x}")
    A("s_waitcnt vmcnt(5)")
    if timing: stamp(A, T1)
    A(f"v_mul_f32 v{vdt}, s40, v{vdt}\nv_mul_f32 v{vla}, s40, v{vla}")
    A(f"v_exp_f32 v{vdt}, v{vdt}\nv_exp_f32 v{vla}, v{vla}")
    A("s_nop 0")
    bf16r(A, vdt); bf16r(A, vla)
    A("s_waitcnt vmcnt(0)")
    va2, vph, vmx = 16, 17, 18
    A(f"v_mul_f32 v{vla}, v{vla}, v{vdt}")
    A(f"v_mul_f32 v{vai}, v{vai}, v{vdt}")
    A(f"v_max3_f32 v{vmx}, |v{vcr}|, |v{vci}|, |v{vcr2}|")
    A(f"v_mul_f32 v{va2}, s40, v{vla}")
    A(f"v_max_f32 v{vmx}, |v{vci2}|, v{vmx}")
    A(f"v_mul_f32 v{vph}, s41, v{vai}")
    W1, W8, W256 = 20, 22, 24
    tm = 26
    for k, (dst, p) in enumerate(((W1, 1.0), (W8, 8.0), (W256, 256.0))):
        A(f"v_mul_f32 v{tm+2*k}, {-p!r}, v{va2}")
        A(f"v_mul_f32 v{tm+2*k+1}, {p!r}, v{vph}")
    steps = ["row_shr:1", "row_shr:2", "row_shr:4", "row_shr:8", "row_bcast:15 row_mask:0xa", "row_bcast:31 row_mask:0xc"]
    def mxstep(i):
        st = steps[i]; rm = "" if "row_mask" in st else " row_mask:0xf"
        A(f"v_max_f32_dpp v{vmx}, v{vmx}, v{vmx} {st}{rm} bank_mask:0xf")
    mxstep(0)
    for k in range(3): A(f"v_exp_f32 v{tm+2*k}, v{tm+2*k}")
    mxstep(1)
    for k in range(3): A(f"v_fract_f32 v{tm+2*k+1}, v{tm+2*k+1}")
    mxstep(2)
    for k, dst in enumerate((W1, W8, W256)): A(f"v_cos_f32 v{dst}, v{tm+2*k+1}")
    mxstep(3)
    for k, dst in enumerate((W1, W8, W256)): A(f"v_sin_f32 v{dst+1}, v{tm+2*k+1}")
    mxstep(4)
    for k, dst in enumerate((W1, W8, W256)):
        A(f"v_mul_f32 v{dst}, v{dst}, v{tm+2*k}")
    mxstep(5)
    for k, dst in enumerate((W1, W8, W256)):
        A(f"v_mul_f32 v{dst+1}, v{dst+1}, v{tm+2*k}")
    A(f"v_readlane_b32 s42, v{vmx}, 63")
    def putF(b, reg):
        A(f"v_cvt_pk_f16_f32 v{tm}, v{reg}, v{reg+1}")
        A(f"ds_write_b32 v{vwa}, v{tm} offset:{(32+b)*ROW}")
    def putG(row, reg):
        A(f"v_cvt_pk_f16_f32 v{tm+1}, v{reg}, -v{reg+1}")
        A(f"ds_write_b32 v{vwa}, v{tm+1} offset:{row*ROW}")
    A(f"v_mov_b32 v{tm}, 0x3c00")
    A(f"ds_write_b32 v{vwa}, v{tm} offset:{32*ROW}")
    A("s_and_b32 s42, s42, 0x7f800000")
    A("s_sub_u32 s43, 0x7f000000, s42")
    G = lambda j: 32 + 2 * j
    A(f"v_mul_f32 v{G(0)}, s43, v{vcr}\nv_mul_f32 v{G(0)+1}, s43, v{vci}")
    vkf = 19
    A(f"v_mul_f32 v{vkf}, s42, v{vdt}\nv_add_f32 v{vkf}, v{vkf}, v{vkf}")
    FA, FB = 50, 52
    P = lambda j: 54 + 2 * (j - 2)
    Pj = lambda j: W256 if j == 1 else P(j)
    T = 66
    work = []
    fch = []
    cur = W8
    fch.append(("putF", 1, W8))
    for b in range(2, 32):
        dst = FA if b % 2 == 0 else FB
        fch.append(("mul", dst, cur, W8)); fch.append(("putF", b, dst)); cur = dst
    gch = []
    rowsR0 = {0: 0, 1: 1, 2: 2, 3: 3, 4: 16, 5: 17, 6: 18, 7: 19}
    gch.append(("putG", 0, G(0)))
    for j in range(1, 9):
        gch.append(("mul", G(j), G(j - 1), W1))
        if j < 8: gch.append(("putG", rowsR0[j], G(j)))
    gch += [("mul", P(2), W256, W256), ("mul", P(3), P(2), W256), ("mul", P(4), P(2), P(2)), ("mul", P(5), P(4), W256),
            ("mul", P(6), P(4), P(2)), ("mul", P(7), P(4), P(3))]
    prods = [(1, 0, 4), (1, 2, 5), (1, 4, 6), (1, 6, 7), (1, 8, 20), (2, 0, 8), (2, 4, 9), (2, 8, 10), (3, 0, 24), (3, 4, 25), (3, 8, 26)]
    for j in range(4): prods += [(4 + j, 0, 12 + j), (4 + j, 8, 28 + j)]
    for i, (pj, gj, row) in enumerate(prods):
        t = T + 2 * (i & 1)
        gch.append(("mul", t, G(gj), Pj(pj))); gch.append(("putG", row, t))
    def emit(op):
        if op[0] == "mul": cmul(A, op[1], op[2], op[3])
        elif op[0] == "putF": putF(op[1], op[2])
        else: putG(op[1], op[2])
    i = j = 0
    while i < len(fch) or j < len(gch):
        if i < len(fch): emit(fch[i]); i += 1
        if j < len(gch): emit(gch[j]); j += 1
    if timing: stamp(A, T2)
    A("s_waitcnt lgkmcnt(0)\ns_barrier")
    fa = 72
    ac = 4
    LQ = Q(A, "lgkmcnt", 14)
    def rd(ks):
        b = fa + 12 * ks
        LQ.issue(ks, f"ds_read_b128 {vr(b+8,4)}, v{vrb} offset:{64*ks}")
        LQ.issue(ks, f"ds_read_b128 {vr(b,4)}, v{vra} offset:{64*ks}")
        LQ.issue(ks, f"ds_read_b128 {vr(b+4,4)}, v{vra} offset:{16*ROW+64*ks}")
    for ks in range(4): rd(ks)
    for ks in range(8):
        LQ.need([ks])
        b = fa + 12 * ks
        for mt in range(2):
            c = vr(ac + 4 * mt, 4)
            A(f"v_mfma_f32_16x16x32_f16 {c}, {vr(b+4*mt,4)}, {vr(b+8,4)}, {c if ks else 0}")
        if ks + 4 < 8: rd(ks + 4)
    A(f"v_and_b32 v{vt}, 1, v{vlane}\nv_cmp_eq_u32 vcc, 0, v{vt}")
    A("s_nop 6")
    for i in range(8): A(f"v_mul_f32 v{ac+i}, v{ac+i}, v{vkf}")
    a0, a1 = ac, ac + 4
    o = 32
    def cv(dst, lo, hi): A(f"v_cvt_pk_bf16_f32 v{dst}, v{lo}, v{hi}")
    def st(reg, blk):
        A(f"s_sub_u32 s39, s38, {16*blk}")
        A(f"buffer_store_dwordx4 {vr(reg,4)}, v{vst}, {sr(sWS,4)}, s39 offen")
    A("s_mov_b64 exec, 0xffff")
    cv(o, a1+3, a1+2); cv(o+1, a1+1, a1); cv(o+2, a0+3, a0+2); cv(o+3, a0+1, a0); st(o, 0)
    A("s_mov_b32 exec_lo, 0xffff0000")
    o += 4
    cv(o, a1, a0+3); cv(o+1, a0+2, a0+2); cv(o+2, a0+2, a0+1); cv(o+3, a0, a0); st(o, 32)
    A("s_mov_b32 exec_lo, 0\ns_mov_b32 exec_hi, 0xffff")
    for k, a in enumerate((a0, a1)):
        o += 4
        cv(o, a+2, a+2); cv(o+1, a+1, a+1); cv(o+2, a+1, a); cv(o+3, a, a); st(o, 64 + 32 * k)
    A("s_mov_b32 exec_hi, 0xffff0000")
    for j in range(4):
        o += 4
        A(f"v_cndmask_b32 v{tm}, v{a1+j}, v{a0+j}, vcc")
        cv(o, a1+j, a1+j); cv(o+2, a0+j, a0+j); cv(o+1, a1+j, tm); cv(o+3, a0+j, a0+j); st(o, 128 + 32 * j)
    if timing:
        A("s_mov_b64 exec, -1")
        timing_tail(A, sWS, sw, 4, TM)
    A("s_endpgm")
    A(f"{name}_ln:")
    A(f"s_load_dwordx2 s[4:5], s[0:1], {KA_U}")
    A(f"s_load_dwordx2 s[6:7], s[0:1], {KA_DSKIP}")
    A(f"s_lshl_b32 s33, s32, 3\ns_lshl_b32 s34, s{sw}, 1\ns_add_u32 s35, s33, s34")
    A("s_lshl_b32 s35, s35, 10")
    A(f"v_lshlrev_b32 v{vt}, 4, v{vlane}")
    A(f"v_add_u32 v{vt2}, s35, v{vt}")
    X = [4, 8]; vD = 12
    A("s_waitcnt lgkmcnt(0)")
    A(f"global_load_dwordx4 {vr(X[0],4)}, v{vt2}, s[4:5]")
    A(f"global_load_dwordx4 {vr(X[1],4)}, v{vt2}, s[4:5] offset:1024")
    A(f"global_load_dwordx4 {vr(vD,4)}, v{vt}, s[6:7]")
    srd(A, sWS, 26, 27, WS_USED)
    UP = 1088; UB = 8 * UP
    BP = 80; BJ = 64 * BP
    vuw, vbw, vur, vbr, vus, vbs = 16, 17, 18, 19, 20, 21
    A(f"s_mul_i32 s36, s34, {UP}")
    A(f"v_add_u32 v{vuw}, s36, v{vt}")
    A(f"s_lshl_b32 s36, s34, 3\ns_add_u32 s36, s36, {UB}")
    A(f"v_mul_u32_u24 v{vbw}, {BP}, v{vlane}\nv_add_u32 v{vbw}, s36, v{vbw}")
    A(f"v_bfe_u32 v{vt}, v{vlane}, 2, 2\nv_mul_u32_u24 v{vur}, {UP}, v{vt}")
    A(f"v_lshrrev_b32 v{vt}, 4, v{vlane}\nv_lshl_add_u32 v{vur}, v{vt}, 5, v{vur}")
    A(f"v_and_b32 v{vt}, 3, v{vlane}\nv_lshl_add_u32 v{vur}, v{vt}, 3, v{vur}")
    A(f"s_lshl_b32 s36, s{sw}, 8\nv_add_u32 v{vur}, s36, v{vur}")
    A(f"s_lshl_b32 s36, s{sw}, 19")
    A(f"v_lshl_add_u32 v{vus}, v{vlane}, 12, s36")
    A(f"s_lshl_b32 s37, s33, 1\ns_add_u32 s37, s37, {UT:#x}")
    A(f"v_lshrrev_b32 v{vt2}, 2, v{vlane}\nv_mul_u32_u24 v{vbr}, {BP}, v{vt2}")
    A(f"v_lshl_add_u32 v{vbr}, v{vt}, 4, v{vbr}")
    A(f"s_mul_i32 s36, s{sw}, {BJ}\ns_add_u32 s36, s36, {UB}\nv_add_u32 v{vbr}, s36, v{vbr}")
    A(f"v_lshlrev_b32 v{vbs}, 16, v{vt2}\nv_lshl_add_u32 v{vbs}, v{vt}, 4, v{vbs}")
    A(f"s_lshl_b32 s38, s{sw}, 14\ns_lshl_b32 s39, s33, 3\ns_add_u32 s38, s38, s39\ns_add_u32 s38, s38, {BS:#x}")
    S = [22, 23]; SS = [24, 25]
    for r in S + SS: A(f"v_mov_b32 v{r}, 0")
    A("v_mov_b32 v26, 0x3f803f80")
    A("s_waitcnt vmcnt(1)")
    if timing: stamp(A, T1)
    for i in range(4):
        for r in range(2):
            A(f"v_dot2c_f32_bf16 v{S[r]}, v{X[r]+i}, v26")
            A(f"v_dot2c_f32_bf16 v{SS[r]}, v{X[r]+i}, v{X[r]+i}")
    XF = [32, 40]
    for r in range(2):
        for i in range(4):
            A(f"v_lshlrev_b32 v{XF[r]+2*i}, 16, v{X[r]+i}")
            A(f"v_and_b32 v{XF[r]+2*i+1}, 0xffff0000, v{X[r]+i}")
    wave_reduce(A, "v_add_f32", S + SS)
    A("s_nop 0")
    for r in range(2):
        A(f"v_readlane_b32 s{40+r}, v{S[r]}, 63")
        A(f"v_readlane_b32 s{42+r}, v{SS[r]}, 63")
    A(f"s_mov_b32 s44, {INV512:#x}")
    M = [28, 30]; R = [48, 50]
    A(f"v_mov_b32 v27, s44")
    for r in range(2): A(f"v_mul_f32 v{M[r]}, s{40+r}, v27")
    for r in range(2): A(f"v_mul_f32 v{R[r]}, s{42+r}, v27")
    for r in range(2): A(f"v_fma_f32 v{R[r]}, -v{M[r]}, v{M[r]}, v{R[r]}")
    for r in range(2): A(f"v_max_f32 v{R[r]}, 0, v{R[r]}")
    for r in range(2): bf16r(A, M[r])
    for r in range(2): bf16r(A, R[r])
    for r in range(2): A(f"v_add_f32 v{R[r]}, 0x3727c5ac, v{R[r]}")
    for r in range(2): bf16r(A, R[r])
    for r in range(2): A(f"v_sqrt_f32 v{R[r]}, v{R[r]}")
    A("s_nop 0")
    for r in range(2): bf16r(A, R[r])
    for r in range(2): A(f"v_rcp_f32 v{R[r]}, v{R[r]}")
    DF = 52
    A("s_waitcnt vmcnt(0)")
    for i in range(4):
        A(f"v_lshlrev_b32 v{DF+2*i}, 16, v{vD+i}")
        A(f"v_and_b32 v{DF+2*i+1}, 0xffff0000, v{vD+i}")
    TT = 60; U = [76, 80]; BB = [84, 92]
    for r in range(2):
        t = TT + 8 * r
        for i in range(4):
            A(f"v_pk_add_f32 {vr(t+2*i,2)}, {vr(XF[r]+2*i,2)}, {vr(M[r],2)} op_sel:[0,0] op_sel_hi:[1,0] neg_lo:[0,1] neg_hi:[0,1]")
        for i in range(4): A(f"v_cvt_pk_bf16_f32 v{U[r]+i}, v{t+2*i}, v{t+2*i+1}")
        for i in range(4):
            A(f"v_lshlrev_b32 v{t+2*i}, 16, v{U[r]+i}")
            A(f"v_and_b32 v{t+2*i+1}, 0xffff0000, v{U[r]+i}")
        for i in range(4):
            A(f"v_pk_mul_f32 {vr(t+2*i,2)}, {vr(t+2*i,2)}, {vr(R[r],2)} op_sel:[0,0] op_sel_hi:[1,0]")
        for i in range(4): A(f"v_cvt_pk_bf16_f32 v{U[r]+i}, v{t+2*i}, v{t+2*i+1}")
        A(f"ds_write_b128 v{vuw}, {vr(U[r],4)} offset:{r*UP}")
        for i in range(4):
            A(f"v_lshlrev_b32 v{t+2*i}, 16, v{U[r]+i}")
            A(f"v_and_b32 v{t+2*i+1}, 0xffff0000, v{U[r]+i}")
        for i in range(4):
            A(f"v_pk_fma_f32 {vr(BB[r]+2*i,2)}, {vr(t+2*i,2)}, {vr(DF+2*i,2)}, {vr(XF[r]+2*i,2)}")
            A(f"ds_write_b64 v{vbw}, {vr(BB[r]+2*i,2)} offset:{i*BJ+8*r}")
    if timing: stamp(A, T2)
    A("s_waitcnt lgkmcnt(0)\ns_barrier")
    for p in range(2):
        for hh in range(2):
            A(f"ds_read_b64_tr_b16 {vr(32+4*p+2*hh,2)}, v{vur} offset:{128*p+4*UP*hh}")
    for it in range(4):
        A(f"ds_read_b128 {vr(40+4*it,4)}, v{vbr} offset:{16*it*BP}")
    A("s_waitcnt lgkmcnt(6)")
    A(f"buffer_store_dwordx4 {vr(32,4)}, v{vus}, {sr(sWS,4)}, s37 offen")
    A(f"s_add_u32 s37, s37, {64*4096}")
    A("s_waitcnt lgkmcnt(4)")
    A(f"buffer_store_dwordx4 {vr(36,4)}, v{vus}, {sr(sWS,4)}, s37 offen")
    for it in range(4):
        A(f"s_waitcnt lgkmcnt({3-it})")
        A(f"buffer_store_dwordx4 {vr(40+4*it,4)}, v{vbs}, {sr(sWS,4)}, s38 offen")
        if it < 3: A(f"s_add_u32 s38, s38, {64*16384}")
    if timing: timing_tail(A, sWS, sw, 4, TM)
    A("s_endpgm")
    A(f"{name}_cs:")
    A(f"s_load_dwordx2 s[4:5], s[0:1], {KA_W1}")
    A("s_sub_u32 s33, s2, 512")
    A(f"v_lshrrev_b32 v{vt}, 3, v0")
    A(f"v_mul_u32_u24 v{vt}, {16*3584}, v{vt}")
    A(f"v_and_b32 v{vt2}, 7, v0\nv_lshl_add_u32 v{vt}, v{vt2}, 4, v{vt}")
    A("s_lshl_b32 s34, s33, 7")
    A("s_waitcnt lgkmcnt(0)")
    srd(A, 8, 4, 5, 512 * 1792 * 2)
    srd(A, sWS, 26, 27, WS_USED)
    for i in range(16):
        A(f"buffer_load_dwordx4 {vr(16+4*i,4)}, v{vt}, s[8:11], s34 offen")
        if i < 15: A("s_add_u32 s34, s34, 3584")
    for i in range(8): A(f"v_mov_b32 v{4+i}, 0")
    A("v_mov_b32 v12, 0x3f80\nv_mov_b32 v13, 0x3f800000")
    for i in range(16):
        A(f"s_waitcnt vmcnt({15-i})")
        for k in range(4):
            A(f"v_dot2c_f32_bf16 v{4+2*k}, v{16+4*i+k}, v12")
            A(f"v_dot2c_f32_bf16 v{5+2*k}, v{16+4*i+k}, v13")
    A(f"v_lshrrev_b32 v{vt}, 3, v0\nv_mul_u32_u24 v{vt}, 272, v{vt}\nv_lshl_add_u32 v{vt}, v{vt2}, 5, v{vt}")
    A("s_nop 1")
    A(f"ds_write_b128 v{vt}, v[4:7]\nds_write_b128 v{vt}, v[8:11] offset:16")
    A("s_waitcnt lgkmcnt(0)\ns_barrier")
    A(f"s_cmp_lg_u32 s{sw}, 0\ns_cbranch_scc1 {name}_end")
    A(f"v_lshlrev_b32 v{vt}, 2, v{vlane}")
    for g in range(32):
        A(f"ds_read_b32 v{16+g}, v{vt} offset:{272*g}")
        if g % 8 == 7: A("s_waitcnt lgkmcnt(4)")
    A("s_waitcnt lgkmcnt(0)")
    n = 32
    while n > 1:
        n //= 2
        for g in range(n): A(f"v_add_f32 v{16+g}, v{16+g}, v{16+g+n}")
    A(f"s_lshl_b32 s34, s33, 8\ns_add_u32 s34, s34, {CS:#x}")
    A(f"buffer_store_dword v16, v{vt}, {sr(sWS,4)}, s34 offen")
    A(f"{name}_end:\ns_endpgm")
    return dict(name=name, code=kernel_head(name) + A.text(), desc=kernel_desc(name, 168, 96), grid=540, block=256, lds=2 * CHB)

def gen_k2(name="k2_kernel", timing=False):
    A = Asm()
    sWS, sRK = 12, 16
    sw = 20
    vlane, vt, vt2 = 1, 2, 3
    PL = 2304; UCH = 2 * PL; WOFF = 2 * UCH; WCH = 16512; YOFF = WOFF + 2 * WCH
    if timing: timing_head(A)
    A(f"s_cmp_ge_u32 s2, 256\ns_cbranch_scc1 {name}_end")
    A(f"s_load_dwordx2 s[26:27], s[0:1], {KA_WS}")
    A(f"v_and_b32 v{vlane}, 63, v0")
    A(f"v_lshrrev_b32 v{vt}, 6, v0")
    A("s_and_b32 s30, s2, 7")
    A(f"v_readfirstlane_b32 s{sw}, v{vt}")
    A("s_lshr_b32 s31, s2, 3")
    A("s_lshl_b32 s32, s30, 5\ns_add_u32 s32, s32, s31")
    A(f"s_lshr_b32 s33, s{sw}, 1")
    A(f"s_and_b32 s34, s{sw}, 1")
    A("s_lshl_b32 s35, s32, 1\ns_add_u32 s35, s35, s33")
    vus, vrk, vww, vW, vU, vbs, vyw, vyr, vho = 4, 5, 6, 7, 8, 9, 10, 11, 12
    A(f"s_lshl_b32 s36, s34, 4")
    A(f"v_lshl_add_u32 v{vus}, v{vlane}, 5, s36")
    A(f"s_lshl_b32 s37, s35, 12\ns_add_u32 s38, s37, {UT:#x}")
    A(f"s_mul_i32 s39, s33, {UCH}\ns_mul_i32 s40, s34, {PL}\ns_add_u32 s40, s40, s39")
    A(f"s_lshl_b32 s36, s34, 11")
    A(f"v_lshl_add_u32 v{vrk}, v{vlane}, 2, s36")
    A(f"s_mul_i32 s41, s33, {WCH}\ns_add_u32 s41, s41, {WOFF}")
    A(f"s_lshl_b32 s36, s34, 13\ns_sub_u32 s36, {16464-7*1024}, s36\ns_add_u32 s36, s36, s41")
    A(f"v_lshlrev_b32 v{vt}, 4, v{vlane}\nv_sub_u32 v{vww}, s36, v{vt}")
    A("s_waitcnt lgkmcnt(0)")
    srd(A, sWS, 26, 27, WS_USED)
    A(f"s_add_u32 s{sRK}, s26, s37\ns_addc_u32 s{sRK+1}, s27, 0")
    A(f"s_add_u32 s{sRK}, s{sRK}, {RK:#x}\ns_addc_u32 s{sRK+1}, s{sRK+1}, 0")
    A(f"s_and_b32 s{sRK+1}, s{sRK+1}, 0xffff\ns_mov_b32 s{sRK+2}, 4096\ns_mov_b32 s{sRK+3}, 0x20000")
    RB = 16
    for it in range(8):
        A(f"buffer_load_dwordx3 {vr(RB+6*it+2,3)}, v{vrk}, {sr(sRK,4)}, 0 offen offset:{256*it}")
    A("s_add_u32 m0, s40, 256")
    A(f"v_add_u32 v{vt2}, 1024, v{vus}")
    A(f"buffer_load_dwordx4 v{vus}, {sr(sWS,4)}, s38 offen lds")
    A(f"buffer_load_dwordx4 v{vt2}, {sr(sWS,4)}, s38 offen offset:1024 lds")
    BR = 200
    A(f"v_lshrrev_b32 v{vt}, 4, v{vlane}\nv_lshlrev_b32 v{vbs}, 9, v{vt}")
    A(f"v_and_b32 v{vt2}, 15, v{vlane}\nv_lshl_add_u32 v{vbs}, v{vt2}, 3, v{vbs}")
    A(f"s_lshl_b32 s42, s32, 14\ns_lshl_b32 s43, s{sw}, 12\ns_add_u32 s42, s42, s43\ns_add_u32 s42, s42, {BS:#x}")
    for tt in range(2):
        for i in range(4):
            A(f"buffer_load_dwordx2 {vr(BR+8*tt+2*i,2)}, v{vbs}, {sr(sWS,4)}, s42 offen offset:{2048*tt+128*i}")
    Z = 64
    for i in range(4): A(f"v_mov_b32 v{Z+i}, 0")
    A(f"v_lshlrev_b32 v{Z+4}, 4, v{vlane}")
    A(f"v_add_u32 v{Z+5}, s41, v{Z+4}\nv_add_u32 v{Z+4}, s40, v{Z+4}")
    A("s_mov_b64 exec, 0xffff")
    A(f"ds_write_b128 v{Z+4}, {vr(Z,4)}")
    A("s_mov_b64 exec, 0x3f")
    A(f"ds_write_b128 v{Z+5}, {vr(Z,4)}")
    A("s_mov_b64 exec, -1")
    A(f"v_and_b32 v{Z}, 1, v{vt}\nv_lshrrev_b32 v{Z+1}, 1, v{vt}")
    A(f"v_lshl_add_u32 v{Z+2}, v{Z}, 1, v{Z+1}")
    A(f"v_lshlrev_b32 v{Z+2}, 6, v{Z+2}")
    A(f"v_lshlrev_b32 v{vW}, 3, v{vt2}\nv_sub_u32 v{vW}, v{vW}, v{Z+2}")
    A(f"s_lshl_b32 s36, s34, 10\ns_add_u32 s36, s36, s41\ns_add_u32 s36, s36, {8*24}")
    A(f"v_add_u32 v{vW}, s36, v{vW}")
    A(f"v_add_u32 v{Z+3}, v{vt2}, v{Z}\nv_lshlrev_b32 v{vU}, 4, v{Z+3}")
    A(f"v_mul_u32_u24 v{Z+1}, {PL}, v{Z+1}\nv_add_u32 v{vU}, v{vU}, v{Z+1}")
    A(f"s_lshl_b32 s36, s34, 7\ns_sub_u32 s36, {16*15-96}, s36\ns_add_u32 s36, s36, s39")
    A(f"v_add_u32 v{vU}, s36, v{vU}")
    A(f"v_lshlrev_b32 v{vyr}, 4, v{vlane}")
    A(f"s_lshl_b32 s36, s{sw}, 13\ns_add_u32 s36, s36, {YOFF}\nv_add_u32 v{vyw}, s36, v{vyr}")
    A(f"s_lshl_b32 s36, s{sw}, 11\ns_add_u32 s36, s36, {YOFF}\nv_add_u32 v{vyr}, s36, v{vyr}")
    A(f"v_lshlrev_b32 v{vho}, 16, v{vt}\nv_lshl_add_u32 v{vho}, v{vt2}, 4, v{vho}")
    A("s_lshr_b32 s36, s32, 2\ns_lshl_b32 s36, s36, 8\ns_and_b32 s43, s32, 3\ns_lshl_b32 s43, s43, 2\ns_add_u32 s36, s36, s43")
    A(f"s_lshl_b32 s43, s{sw}, 19\ns_add_u32 s43, s43, s36\ns_add_u32 s43, s43, {HPK:#x}")
    for it in range(8):
        A(f"s_waitcnt vmcnt({7-it+10})")
        if it == 0 and timing: stamp(A, T1)
        b = RB + 6 * it
        A(f"v_alignbit_b32 v{b}, v{b+3}, v{b+2}, 16")
        A(f"v_alignbit_b32 v{b+1}, v{b+4}, v{b+3}, 16")
        A(f"ds_write_b128 v{vww}, {vr(b,4)} offset:{1024*(7-it)}")
    A("s_waitcnt vmcnt(8) lgkmcnt(0)\ns_barrier")
    if timing: stamp(A, T2)
    FR = [64, 128]
    AC = 16
    LQ = Q(A, "lgkmcnt", 14)
    def reads(rr):
        f = FR[rr & 1]; ops = []
        for k in range(8):
            ops.append((("B", rr, k), f"ds_read_b128 {vr(f+32+4*k,4)}, v{vU} offset:{256*k+32*(3-rr)}"))
            ops.append((("A", rr, k), f"ds_read_b64 {vr(f+4*k,2)}, v{vW} offset:{2048*k+256*rr+32}"))
            ops.append((("A", rr, k), f"ds_read_b64 {vr(f+4*k+2,2)}, v{vW} offset:{2048*k+256*rr}"))
        return ops
    pend = reads(0)
    for _ in range(12): LQ.issue(*pend.pop(0))
    for rr in range(4):
        f = FR[rr & 1]
        nxt = reads(rr + 1) if rr < 3 else []
        cnt = 0
        for tau in range(8):
            LQ.need([("A", rr, tau), ("B", rr, tau)])
            for c in range(tau + 1):
                w = tau - c
                acc = vr(AC + 4 * tau, 4)
                first = (rr == 0 and c == 0)
                A(f"v_mfma_f32_16x16x32_bf16 {acc}, {vr(f+32+4*w,4)}, {vr(f+4*c,4)}, {0 if first else acc}")
                cnt += 1
                if pend:
                    LQ.issue(*pend.pop(0))
                    if pend and tau < 3: LQ.issue(*pend.pop(0))
                elif nxt and cnt >= 8:
                    LQ.issue(*nxt.pop(0))
        assert not pend
        pend = nxt
        assert len(pend) == 0, len(pend)
    if timing: stamp(A, T3)
    A("s_nop 3")
    for tau in range(8):
        if tau == 7: A("s_nop 3")
        A(f"ds_write_b128 v{vyw}, {vr(AC+4*tau,4)} offset:{1024*tau}")
    A("s_waitcnt lgkmcnt(0)\ns_barrier")
    RD = 64
    for tt in range(2):
        for src in range(4):
            A(f"ds_read_b128 {vr(RD+16*tt+4*src,4)}, v{vyr} offset:{8192*src+1024*tt}")
    A("s_waitcnt vmcnt(0)")
    for tt in range(2):
        A(f"s_waitcnt lgkmcnt({4-4*tt})")
        r = RD + 16 * tt
        for i in range(4):
            A(f"v_add_f32 v{r+i}, v{r+i}, v{r+4+i}")
            A(f"v_add_f32 v{r+8+i}, v{r+8+i}, v{r+12+i}")
        for i in range(4):
            A(f"v_add_f32 v{r+i}, v{r+i}, v{BR+8*tt+2*i}")
            A(f"v_add_f32 v{r+8+i}, v{r+8+i}, v{BR+8*tt+2*i+1}")
        for i in range(4):
            A(f"v_cvt_pk_bf16_f32 v{r+4+i}, v{r+i}, v{r+8+i}")
            A(f"s_add_u32 s36, s43, {(16*tt+i)*16384}")
            A(f"buffer_store_dword v{r+4+i}, v{vho}, {sr(sWS,4)}, s36 offen")
    if timing: timing_tail(A, sWS, sw, 4, TM + 0x10000)
    A(f"{name}_end:\ns_endpgm")
    return dict(name=name, code=kernel_head(name) + A.text(), desc=kernel_desc(name, 216, 96), grid=256, block=256, lds=YOFF + 32768)

def gen_k3(name="k3_kernel", timing=False, AHEAD=5, BD=4):
    A = Asm()
    PIECE = 1056; SLOT = 8 * PIECE; NST = 16
    sW1, sWS = 8, 12
    sw, srb, sfs, sAo, sBo, scc = 20, 21, 22, 23, 24, 25
    vlane, vt, vt2 = 1, 2, 3
    if timing: timing_head(A)
    A(f"s_cmp_ge_u32 s2, 224\ns_cbranch_scc1 {name}_end")
    A(f"s_load_dwordx2 s[4:5], s[0:1], {KA_W1}")
    A(f"s_load_dwordx2 s[26:27], s[0:1], {KA_WS}")
    A(f"v_and_b32 v{vlane}, 63, v0")
    A(f"v_lshrrev_b32 v{vt}, 6, v0")
    A("s_and_b32 s30, s2, 7")
    A(f"v_readfirstlane_b32 s{sw}, v{vt}")
    A("s_lshr_b32 s31, s2, 3")
    A("s_mul_i32 s32, s31, 37\ns_lshr_b32 s32, s32, 8")
    A("s_mul_i32 s33, s32, 7\ns_sub_u32 s33, s31, s33")
    A(f"s_lshr_b32 s34, s30, 1\ns_lshl_b32 s34, s34, 2\ns_add_u32 s{srb}, s34, s32")
    A(f"s_and_b32 s34, s30, 1\ns_mul_i32 s34, s34, 7\ns_add_u32 s{sfs}, s34, s33")
    A(f"s_cmp_ge_u32 s{sw}, 4\ns_cbranch_scc0 {name}_compute")
    vA0, vA1 = 4, 5
    A(f"s_sub_u32 s34, s{sw}, 4")
    A(f"v_lshrrev_b32 v{vt}, 5, v{vlane}\nv_lshlrev_b32 v{vt}, 4, v{vt}")
    A(f"v_bfe_u32 v{vt2}, v{vlane}, 4, 1\nv_lshl_add_u32 v{vt}, v{vt2}, 2, v{vt}")
    A("s_lshr_b32 s35, s34, 1\ns_lshl_b32 s35, s35, 3\ns_and_b32 s36, s34, 1\ns_lshl_b32 s36, s36, 1\ns_add_u32 s35, s35, s36")
    A(f"v_add_u32 v{vt}, s35, v{vt}")
    A(f"v_and_b32 v{vt2}, 15, v{vlane}\nv_lshlrev_b32 v{vt2}, 4, v{vt2}")
    A(f"v_mul_u32_u24 v{vA0}, 3584, v{vt}\nv_add_u32 v{vA0}, v{vA0}, v{vt2}")
    A(f"v_add_u32 v{vA1}, {3584-PIECE}, v{vA0}")
    A(f"s_lshl_b32 s{sAo}, s{sfs}, 8")
    A(f"s_mul_i32 s36, s34, {2*PIECE}")
    A("s_waitcnt lgkmcnt(0)")
    srd(A, sW1, 4, 5, 512 * 1792 * 2)
    def issue(c):
        A(f"s_add_u32 m0, s36, {c*SLOT}")
        A("s_nop 0")
        A(f"buffer_load_dwordx4 v{vA0}, {sr(sW1,4)}, s{sAo} offen lds")
        A(f"buffer_load_dwordx4 v{vA1}, {sr(sW1,4)}, s{sAo} offen offset:{PIECE} lds")
        A(f"s_add_u32 s{sAo}, s{sAo}, {32*3584}")
    for c in range(AHEAD): issue(c)
    issued = AHEAD - 1
    for s in range(NST):
        A(f"s_waitcnt vmcnt({2*(issued-s)})")
        A("s_barrier")
        if issued < NST - 1:
            issued += 1; issue(issued)
    A("s_endpgm")
    A(f"{name}_compute:")
    vLA = 4
    vbo = 7
    vones, vss, vm, vho, vso = 10, 14, 16, 18, 19
    vAf = 20
    vacc = 52
    vcs = 124
    vBf = 156
    NB = BD + 1
    nv = vBf + 8 * NB
    A(f"v_lshlrev_b32 v{vho}, 4, v{vlane}")
    A(f"v_add_u32 v{vbo}, 16384, v{vho}")
    A(f"s_lshl_b32 s34, s{srb}, 2\ns_add_u32 s34, s34, s{sw}")
    A(f"s_lshl_b32 s{sBo}, s34, 15\ns_add_u32 s{sBo}, s{sBo}, {HPK:#x}")
    A("s_waitcnt lgkmcnt(0)")
    srd(A, sWS, 26, 27, WS_USED)
    VQ = Q(A, "vmcnt", 62)
    def ldB(s):
        b = vBf + 8 * (s % NB)
        VQ.issue(("B", s), f"buffer_load_dwordx4 {vr(b,4)}, v{vho}, {sr(sWS,4)}, s{sBo} offen offset:{(s%4)*1024}")
        VQ.issue(("B", s), f"buffer_load_dwordx4 {vr(b+4,4)}, v{vbo}, {sr(sWS,4)}, s{sBo} offen offset:{(s%4)*1024}")
        if s % 4 == 3: A(f"s_add_u32 s{sBo}, s{sBo}, 4096")
    for s in range(BD): ldB(s)
    A(f"v_bfe_u32 v{vt}, v{vlane}, 4, 1\nv_lshlrev_b32 v{vt}, 2, v{vt}")
    A(f"v_bfe_u32 v{vt2}, v{vlane}, 2, 2\nv_add_u32 v{vt}, v{vt}, v{vt2}")
    A(f"v_mul_u32_u24 v{vLA}, {PIECE}, v{vt}")
    A(f"v_lshrrev_b32 v{vt}, 5, v{vlane}")
    A(f"v_lshl_add_u32 v{vLA}, v{vt}, 9, v{vLA}")
    A(f"v_and_b32 v{vt}, 3, v{vlane}")
    A(f"v_lshl_add_u32 v{vLA}, v{vt}, 3, v{vLA}")
    for k in (1, 2): A(f"v_add_u32 v{vLA+k}, {6*k*SLOT}, v{vLA}")
    for i in range(4): A(f"v_mov_b32 v{vones+i}, 0x3f803f80")
    A(f"v_mov_b32 v{vss}, 0\nv_mov_b32 v{vss+1}, 0")
    A(f"s_and_b32 s{scc}, s{sfs}, 7")
    A(f"s_mul_i32 s36, s34, {112*1024}\ns_lshl_b32 s35, s{sfs}, 13\ns_add_u32 s36, s36, s35\ns_add_u32 s36, s36, {HP:#x}")
    A(f"v_and_b32 v{vt}, 15, v{vlane}\nv_lshlrev_b32 v{vso}, 2, v{vt}")
    A(f"s_lshl_b32 s37, s34, 7")
    A(f"v_lshrrev_b32 v{vt2}, 4, v{vlane}\nv_lshlrev_b32 v{vt2}, 4, v{vt2}")
    A(f"s_lshl_b32 s38, s{sfs}, 9\ns_add_u32 s38, s38, {CS:#x}")
    LQ = Q(A, "lgkmcnt", 14)
    def rdA(s, mt):
        k, o = s // 6, (s % 6) * SLOT
        for j in range(2):
            LQ.issue(("A", s, mt), f"ds_read_b64_tr_b16 {vr(vAf+4*mt+2*j,2)}, v{vLA+k} offset:{o+256*j+32*mt}")
    A("s_barrier")
    if timing: stamp(A, T1)
    for mt in range(8): rdA(0, mt)
    for s in range(NST):
        if s + 1 < NST: A("s_barrier")
        if s + BD < NST: ldB(s + BD)
        if s + BD == NST:
            for mt in range(8):
                VQ.issue("cs", f"buffer_load_dwordx4 {vr(vcs+4*mt,4)}, v{vt2}, {sr(sWS,4)}, s38 offen offset:{64*mt}")
        VQ.need([("B", s)])
        bf = vBf + 8 * (s % NB)
        for nt in range(2):
            c = vr(vacc + 64 + 4 * nt, 4)
            A(f"v_mfma_f32_16x16x32_bf16 {c}, {vr(vones,4)}, {vr(bf+4*nt,4)}, {c if s else 0}")
        for mt in range(8):
            LQ.need([("A", s, mt)], 13)
            for nt in range(2):
                c = vr(vacc + 8 * mt + 4 * nt, 4)
                A(f"v_mfma_f32_16x16x32_bf16 {c}, {vr(vAf+4*mt,4)}, {vr(bf+4*nt,4)}, {c if s else 0}")
            if s + 1 < NST: rdA(s + 1, mt)
        lb = A.label(name + "_nodot")
        A(f"s_cmp_lg_u32 s{scc}, {s>>1}\ns_cbranch_scc1 {lb}")
        for i in range(4):
            for nt in range(2):
                A(f"v_dot2c_f32_bf16 v{vss+nt}, v{bf+4*nt+i}, v{bf+4*nt+i}")
        A(f"{lb}:")
    if timing: stamp(A, T2)
    for nt in range(2):
        A(f"v_mul_f32 v{vm+nt}, {INV512:#x}, v{vacc+64+4*nt}")
    for nt in range(2): bf16r(A, vm + nt)
    A("s_waitcnt vmcnt(0)")
    for mt in range(8):
        for nt in range(2):
            c = vacc + 8 * mt + 4 * nt
            for hh in range(2):
                A(f"v_pk_fma_f32 {vr(c+2*hh,2)}, {vr(vm,2)}, {vr(vcs+4*mt+2*hh,2)}, {vr(c+2*hh,2)} op_sel:[{nt},0,0] op_sel_hi:[{nt},1,1] neg_lo:[1,0,0] neg_hi:[1,0,0]")
        p = vAf + 4 * mt
        for nt in range(2):
            c = vacc + 8 * mt + 4 * nt
            for hh in range(2):
                A(f"v_cvt_pk_bf16_f32 v{p+2*nt+hh}, v{c+2*hh}, v{c+2*hh+1}")
        for i in range(4):
            A(f"v_pk_max_i16 v{p+i}, v{p+i}, 0")
        if mt >= 1:
            pp = vAf + 4 * (mt - 1)
            A(f"v_permlane16_swap_b32 v{pp}, v{pp+2}")
            A(f"v_permlane16_swap_b32 v{pp+1}, v{pp+3}")
            if (mt - 1) == 4: A("s_add_u32 s36, s36, 4096")
            A(f"buffer_store_dwordx4 {vr(pp,4)}, v{vho}, {sr(sWS,4)}, s36 offen offset:{((mt-1)%4)*1024}")
    pp = vAf + 28
    A("s_nop 1")
    A(f"v_permlane16_swap_b32 v{pp}, v{pp+2}")
    A(f"v_permlane16_swap_b32 v{pp+1}, v{pp+3}")
    A(f"buffer_store_dwordx4 {vr(pp,4)}, v{vho}, {sr(sWS,4)}, s36 offen offset:3072")
    lb = A.label(name + "_nost")
    A(f"s_cmp_ge_u32 s{sfs}, 8\ns_cbranch_scc1 {lb}")
    for nt in range(2): A(f"v_mov_b32 v{vm+nt}, v{vss+nt}")
    A("s_nop 1")
    for nt in range(2): A(f"v_permlane16_swap_b32 v{vm+nt}, v{vss+nt}")
    for nt in range(2): A(f"v_add_f32 v{vss+nt}, v{vss+nt}, v{vm+nt}")
    for nt in range(2): A(f"v_mov_b32 v{vm+nt}, v{vss+nt}")
    A("s_nop 1")
    for nt in range(2): A(f"v_permlane32_swap_b32 v{vm+nt}, v{vss+nt}")
    for nt in range(2): A(f"v_add_f32 v{vss+nt}, v{vss+nt}, v{vm+nt}")
    A(f"s_lshl_b32 s35, s{sfs}, 13\ns_add_u32 s35, s35, s37\ns_add_u32 s35, s35, {ST+8192:#x}")
    for nt in range(2):
        A(f"buffer_store_dword v{vss+nt}, v{vso}, {sr(sWS,4)}, s35 offen offset:{64*nt}")
    A(f"s_cmp_lg_u32 s{sfs}, 0\ns_cbranch_scc1 {lb}")
    A(f"s_add_u32 s35, s37, {ST:#x}")
    for nt in range(2):
        A(f"buffer_store_dword v{vacc+64+4*nt}, v{vso}, {sr(sWS,4)}, s35 offen offset:{64*nt}")
    A(f"{lb}:")
    if timing:
        stamp(A, T3)
        timing_tail(A, sWS, sw, 4, TM + 0x18000)
    A(f"{name}_end:\ns_endpgm")
    return dict(name=name, code=kernel_head(name) + A.text(), desc=kernel_desc(name, nv, 96), grid=224, block=512, lds=NST * SLOT)

def gen_k4(name="k4_kernel", timing=False, D=8):
    A = Asm()
    NS = D + 1
    SLOT = 2048
    WAVE_LDS = NS * SLOT
    sW2, sWS, sOUT = 8, 12, 16
    sw, slt, sdt, sHoff, sWoff, sM0 = 20, 21, 22, 23, 24, 25
    vlane, vH0, vH1, vW0, vW1, vA0, vA1, vtmp, vr_, vtmp2 = 1, 2, 3, 4, 5, 6, 7, 8, 9, 10
    vres = 12
    vrf = 20
    vst = 36
    vout = 45
    vAf = 48
    vacc = 64
    vHr = 128
    nv = max(vHr + 8 * NS, vHr + 48)
    if timing: timing_head(A)
    A(f"s_cmp_ge_u32 s2, 256\ns_cbranch_scc1 {name}_end")
    A(f"s_load_dwordx4 s[4:7], s[0:1], {KA_W2}")
    A(f"s_load_dwordx2 s[26:27], s[0:1], {KA_WS}")
    A(f"v_and_b32 v{vlane}, 63, v0")
    A(f"v_lshrrev_b32 v{vtmp}, 6, v0")
    A(f"s_and_b32 s30, s2, 7")
    A(f"v_readfirstlane_b32 s{sw}, v{vtmp}")
    A(f"s_lshr_b32 s31, s2, 3")
    A(f"s_lshr_b32 s32, s30, 1\ns_lshl_b32 s{slt}, s32, 3")
    A(f"s_lshr_b32 s32, s31, 2")
    A(f"s_add_u32 s{slt}, s{slt}, s32")
    A(f"s_and_b32 s32, s30, 1\ns_lshl_b32 s32, s32, 2")
    A(f"s_and_b32 s{sdt}, s31, 3\ns_add_u32 s{sdt}, s{sdt}, s32")
    A(f"s_and_b32 s33, s{sw}, 1")
    A(f"s_lshr_b32 s34, s{sw}, 1")
    A(f"v_lshlrev_b32 v{vH0}, 4, v{vlane}")
    A(f"s_mul_i32 s35, s33, {112*1024}")
    A(f"s_xor_b32 s36, s33, 1")
    A(f"s_mul_i32 s36, s36, {112*1024}")
    A(f"v_add_u32 v{vH1}, s36, v{vH0}")
    A(f"v_add_u32 v{vH0}, s35, v{vH0}")
    A(f"s_mul_i32 s{sHoff}, s{slt}, {2*112*1024}")
    A(f"s_mul_i32 s35, s{sw}, {28*1024}")
    A(f"s_add_u32 s{sHoff}, s{sHoff}, s35")
    A(f"s_add_u32 s{sHoff}, s{sHoff}, {HP:#x}")
    A(f"v_lshrrev_b32 v{vtmp}, 3, v{vlane}")
    A(f"v_lshlrev_b32 v{vW0}, 10, v{vtmp}")
    A(f"v_lshrrev_b32 v{vtmp}, 2, v{vlane}")
    A(f"v_and_b32 v{vtmp}, 4, v{vtmp}")
    A(f"v_and_b32 v{vtmp2}, 7, v{vlane}")
    A(f"v_xor_b32 v{vtmp}, v{vtmp}, v{vtmp2}")
    A(f"v_lshl_add_u32 v{vW0}, v{vtmp}, 4, v{vW0}")
    A(f"v_add_u32 v{vW1}, {8192-1024}, v{vW0}")
    A(f"s_mul_i32 s{sWoff}, s{sw}, {448*1024}")
    A(f"s_lshl_b32 s35, s{sdt}, 7")
    A(f"s_add_u32 s{sWoff}, s{sWoff}, s35")
    A(f"s_mul_i32 s{sM0}, s{sw}, {WAVE_LDS}")
    A("s_waitcnt lgkmcnt(0)")
    srd(A, sW2, 4, 5, 1792 * 512 * 2)
    srd(A, sWS, 26, 27, WS_USED)
    VQ = Q(A, "vmcnt", 62)
    def issue(s):
        slot = s % NS
        hr = vHr + 8 * (s % NS)
        A(f"s_add_u32 m0, s{sM0}, {slot*SLOT}")
        VQ.issue(s, f"buffer_load_dwordx4 {vr(hr,4)}, v{vH0}, {sr(sWS,4)}, s{sHoff} offen offset:{(s%4)*1024}")
        VQ.issue(s, f"buffer_load_dwordx4 v{vW0}, {sr(sW2,4)}, s{sWoff} offen lds")
        VQ.issue(s, f"buffer_load_dwordx4 {vr(hr+4,4)}, v{vH1}, {sr(sWS,4)}, s{sHoff} offen offset:{(s%4)*1024}")
        VQ.issue(s, f"buffer_load_dwordx4 v{vW1}, {sr(sW2,4)}, s{sWoff} offen offset:1024 lds")
        A(f"s_add_u32 s{sWoff}, s{sWoff}, {16*1024}")
        if s % 4 == 3: A(f"s_add_u32 s{sHoff}, s{sHoff}, 4096")
    def trread(s):
        slot = s % NS
        af = vAf + 8 * (s & 1)
        for a, va in ((0, vA0), (1, vA1)):
            for j in range(2):
                A(f"ds_read_b64_tr_b16 {vr(af+4*a+2*j,2)}, v{va} offset:{slot*SLOT+512*j}")
    NST = 28
    for s in range(D): issue(s)
    srd(A, sOUT, 6, 7, 2048 * 512 * 2)
    A(f"v_lshrrev_b32 v{vtmp}, 5, v{vlane}")
    A(f"v_lshlrev_b32 v{vA0}, 10, v{vtmp}")
    A(f"v_bfe_u32 v{vtmp}, v{vlane}, 2, 2")
    A(f"v_lshl_add_u32 v{vA0}, v{vtmp}, 7, v{vA0}")
    A(f"v_lshrrev_b32 v{vtmp}, 1, v{vtmp}")
    A(f"v_xor_b32 v{vtmp}, s34, v{vtmp}")
    A(f"v_bfe_u32 v{vtmp2}, v{vlane}, 4, 1")
    A(f"v_lshl_add_u32 v{vA0}, v{vtmp2}, 5, v{vA0}")
    A(f"v_and_b32 v{vtmp2}, 3, v{vlane}")
    A(f"v_lshl_add_u32 v{vA0}, v{vtmp2}, 3, v{vA0}")
    A(f"v_add_u32 v{vA0}, s{sM0}, v{vA0}")
    A(f"v_xor_b32 v{vtmp2}, 1, v{vtmp}")
    A(f"v_lshl_add_u32 v{vA1}, v{vtmp2}, 6, v{vA0}")
    A(f"v_lshl_add_u32 v{vA0}, v{vtmp}, 6, v{vA0}")
    A(f"v_and_b32 v{vtmp}, 31, v{vlane}")
    A(f"s_lshl_b32 s35, s{slt}, 6\ns_lshl_b32 s36, s33, 5\ns_add_u32 s35, s35, s36")
    A(f"v_add_u32 v{vtmp}, s35, v{vtmp}")
    A(f"v_lshlrev_b32 v11, 2, v{vtmp}")
    A(f"v_lshrrev_b32 v{vtmp2}, 5, v{vlane}")
    A(f"s_lshl_b32 s36, s{sdt}, 6\ns_lshl_b32 s37, s34, 5\ns_add_u32 s36, s36, s37")
    A(f"v_lshlrev_b32 v{vout}, 10, v{vtmp}")
    A(f"v_lshl_add_u32 v{vout}, v{vtmp2}, 4, v{vout}")
    A(f"s_lshl_b32 s37, s36, 1")
    A(f"v_add_u32 v{vout}, s37, v{vout}")
    A(f"v_lshrrev_b32 v46, 4, v{vtmp}\nv_lshlrev_b32 v46, 14, v46")
    A(f"v_and_b32 v{vtmp}, 15, v{vtmp}\nv_lshl_add_u32 v46, v{vtmp}, 4, v46")
    A(f"v_lshl_add_u32 v46, v{vtmp2}, 3, v46")
    A(f"s_lshl_b32 s36, s36, 5\ns_add_u32 s36, s36, {HPK:#x}")
    VQ.need([0])
    if timing: stamp(A, T1)
    trread(0)
    for s in range(NST):
        if s + D < NST: issue(s + D)
        if s + D == NST + 1:
            for j in range(4):
                VQ.issue("x", f"buffer_load_dwordx2 {vr(vres+2*j,2)}, v46, {sr(sWS,4)}, s36 offen offset:{256*j}")
            for p in range(9):
                A(f"s_mov_b32 s37, {ST+8192*p:#x}")
                VQ.issue("x", f"buffer_load_dword v{vst+p}, v11, {sr(sWS,4)}, s37 offen")
        if s + 1 < NST:
            VQ.need([s + 1])
            trread(s + 1)
            A("s_waitcnt lgkmcnt(4)")
        else:
            A("s_waitcnt lgkmcnt(0)")
        af = vAf + 8 * (s & 1)
        hr = vHr + 8 * (s % NS)
        for a in range(2):
            for b in range(2):
                c = vr(vacc + 16 * (2 * a + b), 16)
                A(f"v_mfma_f32_32x32x16_bf16 {c}, {vr(af+4*a,4)}, {vr(hr+4*b,4)}, {c if s else 0}")
    if timing: stamp(A, T2)
    A("s_barrier")
    A(f"v_lshlrev_b32 v{vA0}, 4, v{vlane}")
    for ab in range(1, 4):
        A(f"s_xor_b32 s35, s{sw}, {ab}")
        A(f"s_mul_i32 s35, s35, {3*4096}")
        A(f"v_add_u32 v{vA1}, s35, v{vA0}")
        if ab == 1: A("s_nop 7")
        for j in range(4):
            A(f"ds_write_b128 v{vA1}, {vr(vacc+16*ab+4*j,4)} offset:{(ab-1)*4096+1024*j}")
    A("s_waitcnt vmcnt(0)")
    for p in range(4): A(f"v_add_f32 v{vst+1+p}, v{vst+1+p}, v{vst+5+p}")
    A(f"v_add_f32 v{vst+1}, v{vst+1}, v{vst+2}")
    A(f"v_add_f32 v{vst+3}, v{vst+3}, v{vst+4}")
    A(f"v_mul_f32 v{vst}, {INV512:#x}, v{vst}")
    A(f"v_add_f32 v{vst+1}, v{vst+1}, v{vst+3}")
    A(f"v_mul_f32 v{vst+2}, v{vst}, v{vst}")
    A(f"s_mov_b32 s35, {INV512:#x}")
    A(f"v_fma_f32 v{vst+1}, v{vst+1}, s35, -v{vst+2}")
    A(f"v_max_f32 v{vst+1}, 0, v{vst+1}")
    bf16r(A, vst + 1)
    A(f"v_add_f32 v{vst+1}, 0x3727c5ac, v{vst+1}")
    bf16r(A, vst + 1)
    A(f"v_sqrt_f32 v{vst+1}, v{vst+1}")
    A("s_nop 0")
    bf16r(A, vst + 1)
    A(f"v_rcp_f32 v{vr_}, v{vst+1}")
    for k in range(8):
        A(f"v_lshlrev_b32 v{vrf+2*k}, 16, v{vres+k}")
        A(f"v_and_b32 v{vrf+2*k+1}, 0xffff0000, v{vres+k}")
    A(f"s_mul_i32 s35, s{sw}, {3*4096}")
    A(f"v_add_u32 v{vA1}, s35, v{vA0}")
    A("s_waitcnt lgkmcnt(0)\ns_barrier")
    rd = vHr
    for i in range(3):
        for j in range(4):
            A(f"ds_read_b128 {vr(rd+16*i+4*j,4)}, v{vA1} offset:{i*4096+1024*j}")
    for i in range(3):
        A(f"s_waitcnt lgkmcnt({8-4*i})")
        for k in range(0, 16, 2):
            A(f"v_pk_add_f32 {vr(vacc+k,2)}, {vr(vacc+k,2)}, {vr(rd+16*i+k,2)}")
    for k in range(16):
        A(f"v_fma_f32 v{vacc+k}, v{vacc+k}, v{vr_}, v{vrf+k}")
    for k in range(8):
        A(f"v_cvt_pk_bf16_f32 v{vAf+k}, v{vacc+2*k}, v{vacc+2*k+1}")
    A("s_nop 1")
    for jj in range(2):
        b = vAf + 4 * jj
        A(f"v_permlane32_swap_b32 v{b}, v{b+2}")
        A(f"v_permlane32_swap_b32 v{b+1}, v{b+3}")
    for jj in range(2):
        A(f"buffer_store_dwordx4 {vr(vAf+4*jj,4)}, v{vout}, {sr(sOUT,4)}, 0 offen offset:{32*jj}")
    if timing:
        stamp(A, T3)
        timing_tail(A, sWS, sw, 4, TM + 0x20000)
    A(f"{name}_end:\ns_endpgm")
    lds = max(4 * WAVE_LDS, 4 * 3 * 4096)
    return dict(name=name, code=kernel_head(name) + A.text(), desc=kernel_desc(name, nv, 96), grid=256, block=256, lds=lds)

def assemble(kernels, launches=None):
    hdr = open("sequential_preLN__ssm_conv_s4d__dense_activation_relu__prompt.s.ref").read().split("; Override")[0]
    out = hdr
    for k in (launches or kernels):
        out += f"; @launch kernel={k['name']} grid=({k['grid']},1,1) block=({k['block']},1,1) lds={k['lds']}\n"
    out += '.amdgcn_target "amdgcn-amd-amdhsa--gfx950"\n'
    for k in kernels: out += k["code"]
    for k in kernels: out += k["desc"]
    return out

def all_kernels(timing=False):
    return [gen_k1(timing=timing), gen_k2(timing=timing), gen_k3(timing=timing), gen_k4(timing=timing)]

if __name__ == "__main__":
    open("full_t.s", "w").write(assemble(all_kernels(True)))
    open("sequential_preLN__ssm_conv_s4d__dense_activation_relu__prompt.s", "w").write(assemble(all_kernels(False)))
```

```python
import gen
from asmlib import *
def empty(name="nop_kernel", grid=1):
    return dict(name=name, code=kernel_head(name) + "    s_endpgm\n", desc=kernel_desc(name, 8, 16), grid=grid, block=64, lds=0)
ks = gen.all_kernels(False)
e = empty(); e256 = empty("nopb_kernel", 256)
open("v_base.s","w").write(gen.assemble(ks))
open("v_tail4.s","w").write(gen.assemble(ks+[e], ks+[e]*4))
open("v_head4.s","w").write(gen.assemble(ks+[e], [e]*4+ks))
open("v_tail8b.s","w").write(gen.assemble(ks+[e256], ks+[e256]*8))
open("v_twice.s","w").write(gen.assemble(ks, ks+ks))
```
